```python
import torch

def _softmax(x, axis=-1):
    return torch.softmax(x, dim=axis)
def _gelu(x):
    return torch.nn.functional.gelu(x, approximate="tanh")
def _silu(x):
    return torch.nn.functional.silu(x)
def _sigmoid(x):
    return torch.sigmoid(x)
def _layernorm(x, axis=-1, eps=1e-5):
    m = x.mean(dim=axis, keepdim=True)
    v = x.var(dim=axis, keepdim=True, unbiased=False)
    return (x - m) / torch.sqrt(v + eps)
def _scatter_add(tgt, idx, src, axis=0):
    return tgt.clone().index_add_(axis, idx, src)
def _segment_sum(src, seg, n):
    out = torch.zeros((n,) + src.shape[1:], dtype=src.dtype)
    return out.index_add_(0, seg, src)
def _pad(x, pw):
    flat = tuple(v for pair in reversed(pw) for v in pair)
    return torch.nn.functional.pad(x, flat)

kernel_name = 'gated_mix__softmax_full_mha__mixer_s_mlp__prompt'

def setup_inputs():

    _w = (lambda a: (lambda t: t.to(torch.bfloat16) if t.is_floating_point() else t)(torch.as_tensor(a)))
    def _A_setup():
        B, S, D = 1, 2048, 512
        return {
            "x": _w((lambda *s: torch.randn(*s, dtype=torch.bfloat16) * 0.05)(B, S, D)),
            "wqkv": _w((lambda *s: torch.randn(*s, dtype=torch.bfloat16) * 1.6)(D, 3 * D)),
            "wo": _w((lambda *s: torch.randn(*s, dtype=torch.bfloat16) * 0.1)(D, D)),
        }
    _A_in = _A_setup()

    def _B_setup():
        B, S, D, F = 1, 2048, 512, 1792
        return {
            "x":  _w((lambda *s: torch.randn(*s, dtype=torch.bfloat16) * 0.05)(B, S, D)),
            "w1": _w((lambda *s: torch.randn(*s, dtype=torch.bfloat16) * 3.2)(D, D) * (D ** -0.5)),
            "w2": _w((lambda *s: torch.randn(*s, dtype=torch.bfloat16) * 3.2)(D, D) * (D ** -0.5)),
            "w3": _w((lambda *s: torch.randn(*s, dtype=torch.bfloat16) * 3.2)(D, F) * (D ** -0.5)),
            "w4": _w((lambda *s: torch.randn(*s, dtype=torch.bfloat16) * 1.6)(F, D) * (F ** -0.5)),
        }
    _B_in = _B_setup()

    return {
        "A_x": _A_in["x"],
        "A_wqkv": _A_in["wqkv"],
        "A_wo": _A_in["wo"],
        "B_x": _B_in["x"],
        "B_w1": _B_in["w1"],
        "B_w2": _B_in["w2"],
        "B_w3": _B_in["w3"],
        "B_w4": _B_in["w4"],
        "gate_w": _w((lambda *s: torch.randn(*s, dtype=torch.bfloat16) * 0.05)(512) * 16.0),
    }

def reference(A_x, A_wqkv, A_wo, B_x, B_w1, B_w2, B_w3, B_w4, gate_w):
    def _A_ref(x, wqkv, wo):
        B, S, D = x.shape
        H = 32; Dh = D // H
        qkv = (lambda x, *d: x.permute(*d))((x @ wqkv).reshape(B, S, 3, H, Dh), 2, 0, 3, 1, 4)
        q, k, v = qkv[0], qkv[1], qkv[2]
        scale = Dh ** -0.5
        scores = torch.einsum("bhqd,bhkd->bhqk", q, k) * scale
        p = _softmax(scores, axis=-1)
        o = torch.einsum("bhqk,bhkd->bhqd", p, v)
        return (lambda x, *d: x.permute(*d))(o, 0, 2, 1, 3).reshape(B, S, D) @ wo

    def _B_ref(x, w1, w2, w3, w4):
        B, S, D = x.shape
        h = _gelu(_layernorm(x, axis=-1) @ w1)
        c = D // 4
        g0 = _pad(h[:, :, 0*c:1*c], ((0, 0), (1, 0), (0, 0)))[:, :S, :]
        g1 = _pad(h[:, :, 1*c:2*c], ((0, 0), (0, 1), (0, 0)))[:, 1:, :]
        g2 = _pad(h[:, :, 2*c:3*c], ((0, 0), (2, 0), (0, 0)))[:, :S, :]
        g3 = _pad(h[:, :, 3*c:   ], ((0, 0), (0, 2), (0, 0)))[:, 2:, :]
        hs = torch.concatenate([g0, g1, g2, g3], axis=-1) @ w2
        x1 = x + hs
        h2 = _gelu(_layernorm(x1, axis=-1) @ w3) @ w4
        return x1 + h2

    x = A_x
    g = _sigmoid((x * gate_w).sum(-1, keepdims=True))
    a = _A_ref(x, A_wqkv, A_wo)
    b = _B_ref(x, B_w1, B_w2, B_w3, B_w4)
    return g * a + (1 - g) * b
```

```python
import re

TRANS = ("v_exp_f32", "v_log_f32", "v_rcp_f32", "v_rsq_f32", "v_sqrt_f32", "v_sin_f32", "v_cos_f32",
         "v_exp_f16", "v_rcp_f16", "v_rsq_f16", "v_rcp_iflag_f32")

def parse_regs(tok):
    tok = tok.strip()
    tok = re.sub(r"^-", "", tok)
    m = re.match(r"^(?:abs|neg)\((.*)\)$", tok)
    if m: tok = m.group(1)
    tok = tok.strip("|")
    m = re.match(r"^([vas])\[(\d+):(\d+)\]$", tok)
    if m:
        return {(m.group(1), i) for i in range(int(m.group(2)), int(m.group(3)) + 1)}
    m = re.match(r"^([vas])(\d+)$", tok)
    if m:
        return {(m.group(1), int(m.group(2)))}
    if tok == "vcc": return {("s", "vcc_lo"), ("s", "vcc_hi")}
    if tok in ("vcc_lo", "vcc_hi"): return {("s", tok)}
    if tok == "exec": return {("s", "exec_lo"), ("s", "exec_hi")}
    if tok in ("exec_lo", "exec_hi"): return {("s", tok)}
    if tok == "m0": return {("s", "m0")}
    return set()

def split_ops(s):
    ops, depth, cur = [], 0, ""
    for ch in s:
        if ch in "[(": depth += 1
        if ch in "])": depth -= 1
        if ch == "," and depth == 0:
            ops.append(cur.strip()); cur = ""
        else:
            cur += ch
    if cur.strip(): ops.append(cur.strip())
    return ops

class Ins:
    def __init__(self, text):
        self.text = text
        t = text.split(";")[0].strip()
        self.label = None
        self.op = None
        self.directive = False
        if not t:
            self.directive = True; return
        if t.endswith(":"):
            self.label = t[:-1]; return
        if t.startswith("."):
            self.directive = True; return
        parts = t.split(None, 1)
        self.op = parts[0]
        rest = parts[1] if len(parts) > 1 else ""
        raw = split_ops(rest)
        ops = []
        self.mods = ""
        for i, o in enumerate(raw):
            w = o.split()
            if i == len(raw) - 1 and len(w) > 1 and not o.startswith("hwreg"):
                ops.append(w[0]); self.mods = " ".join(w[1:])
            else:
                ops.append(o)
        self.ops = ops
        op = self.op
        R = [parse_regs(o) for o in ops]
        self.wr = set(); self.rd = set()
        self.kind = "other"
        self.A = self.B = self.C = set()
        self.passes = 0
        self.store_data = set()
        if op.startswith("v_mfma") or op.startswith("v_smfmac"):
            self.kind = "mfma"
            self.wr = R[0]; self.A = R[1]; self.B = R[2]
            if op.startswith("v_smfmac"):
                self.C = R[0]; self.B = R[2] | R[3]
            else:
                self.C = R[3]
            self.rd = self.A | self.B | self.C
            self.passes = 8 if "32x32" in op else 4
        elif op.startswith("v_"):
            self.kind = "valu"
            base = op.replace("_e32", "").replace("_e64", "").replace("_dpp", "").replace("_sdwa", "")
            self.base = base
            if base.startswith("v_cmpx"):
                self.wr = R[0] | parse_regs("exec"); self.rd = set().union(*R[1:])
            elif base.startswith("v_cmp"):
                self.wr = R[0]; self.rd = set().union(*R[1:])
            elif base in ("v_add_co_u32", "v_sub_co_u32", "v_addc_co_u32", "v_subb_co_u32", "v_subrev_co_u32", "v_div_scale_f32", "v_mad_u64_u32"):
                self.wr = R[0] | R[1]; self.rd = set().union(*R[2:])
            elif base.startswith("v_permlane") and "swap" in base:
                self.wr = R[0] | R[1]; self.rd = R[0] | R[1]
            elif base in ("v_fmac_f32", "v_dot2c_f32_bf16", "v_pk_fmac_f16", "v_writelane_b32", "v_dot2c_f32_f16"):
                self.wr = R[0]; self.rd = set().union(*R)
            elif base == "v_nop":
                pass
            else:
                self.wr = R[0]; self.rd = set().union(*R[1:]) if len(R) > 1 else set()
                if "_dpp" in op or "_sdwa" in op or "row_" in self.mods or "quad_perm" in self.mods: self.rd |= R[0]
            self.trans = base in TRANS
            self.dpp = "_dpp" in op or "row_" in self.mods or "quad_perm" in self.mods
        elif op.startswith("ds_"):
            self.kind = "ds"
            if op.startswith("ds_read") or op.startswith("ds_bpermute") or op.startswith("ds_permute") or op.startswith("ds_swizzle") or "_rtn" in op:
                self.wr = R[0]; self.rd = set().union(*R[1:])
            else:
                self.rd = set().union(*R)
        elif op.startswith("buffer_") or op.startswith("global_") or op.startswith("flat_"):
            self.kind = "vmem"
            lds = (" lds" in " " + self.mods) or "_lds_" in op
            self.lds = lds
            if op in ("buffer_inv", "buffer_wbl2"):
                pass
            elif "load" in op and not lds:
                self.wr = R[0]; self.rd = set().union(*R[1:])
                if "d16" in op: self.rd |= R[0]
            elif lds:
                self.rd = set().union(*R) | {("s", "m0")}
            elif "atomic" in op:
                self.rd = set().union(*R)
                if "sc0" in self.mods: self.wr = R[0]
            else:
                self.rd = set().union(*R)
                if "x4" in op or "x3" in op:
                    self.store_data = R[0] if op.startswith("buffer_") else R[1]
        elif op.startswith("s_"):
            self.kind = "salu"
            if op.startswith("s_cmp") or op.startswith("s_cbranch") or op in ("s_branch", "s_waitcnt", "s_barrier", "s_nop", "s_endpgm", "s_setprio", "s_sleep", "s_bitcmp0_b32", "s_bitcmp1_b32"):
                self.rd = set().union(*R) if R else set()
            else:
                self.wr = R[0] if R else set()
                self.rd = set().union(*R[1:]) if len(R) > 1 else set()
                if "saveexec" in op: self.wr = self.wr | parse_regs("exec")
    def states(self):
        if self.op is None: return 0
        if self.op == "s_nop": return int(self.ops[0], 0) + 1
        return 1

def vregs(s): return {r for r in s if r[0] in "va"}
def sregs(s): return {r for r in s if r[0] == "s"}

def need(p, c):
    n = 0
    if p.kind == "valu":
        pv = vregs(p.wr); ps = sregs(p.wr)
        if c.kind == "mfma" and pv & c.rd: n = max(n, 2)
        if c.kind == "mfma" and ps & parse_regs("exec"): n = max(n, 4)
        if c.kind == "valu":
            if p.trans and not c.trans and pv & c.rd: n = max(n, 1)
            if p.trans and c.trans and pv & c.rd: n = max(n, 1)
            if c.base.startswith("v_permlane") and pv & c.rd: n = max(n, 2)
            if c.base in ("v_readfirstlane_b32", "v_readlane_b32") and pv & c.rd: n = max(n, 1)
            if c.dpp and pv & c.rd: n = max(n, 2)
            if ps & c.rd: n = max(n, 2)
            if c.base in ("v_readlane_b32", "v_writelane_b32") and ps & c.rd: n = max(n, 4)
            if c.base == "v_div_fmas_f32" and ps: n = max(n, 4)
            if c.base == "v_cndmask_b32" and len(c.ops) == 3 and ps & parse_regs("vcc"): n = max(n, 2)
            if ps & parse_regs("exec"):
                if c.dpp: n = max(n, 5)
                if c.base.startswith("v_permlane") or c.base in ("v_readfirstlane_b32", "v_readlane_b32", "v_writelane_b32"): n = max(n, 4)
            if ("sdwa" in p.op or "op_sel" in p.mods) and pv & (c.rd | c.wr): n = max(n, 1)
        if p.base.startswith("v_dot"):
            if c.kind == "valu" and c.base == p.base:
                srcab = set().union(*[parse_regs(o) for o in c.ops[1:3]])
                if pv & srcab: n = max(n, 3)
            elif pv & (c.rd | c.wr): n = max(n, 3)
        if c.kind == "vmem" and ps & c.rd: n = max(n, 5)
        if c.kind == "salu" and ps & c.rd: n = max(n, 2)
        if c.kind == "salu" and c.op.startswith("s_cbranch_vcc") and ps & parse_regs("vcc"): n = max(n, 5)
        if c.kind == "salu" and c.op.startswith("s_cbranch_exec") and ps & parse_regs("exec"): n = max(n, 5)
    if p.kind == "mfma":
        D = p.wr
        big = {8: 12, 4: 8}[p.passes]; ov = {8: 10, 4: 6}[p.passes]; war = {8: 7, 4: 3}[p.passes]
        if c.kind == "mfma":
            if D & (c.A | c.B): n = max(n, big)
            if D & c.C:
                same_class = (p.op.startswith("v_smfmac") == c.op.startswith("v_smfmac"))
                if not (c.C == D and c.passes == p.passes): n = max(n, ov)
            elif D & c.wr: n = max(n, ov)
        elif c.kind in ("valu", "ds", "vmem"):
            if D & (c.rd | c.wr): n = max(n, big)
        if c.kind == "valu" and (p.C & c.wr): n = max(n, war)
    if p.kind == "salu" and ("s", "m0") in p.wr:
        if c.kind == "vmem" and getattr(c, "lds", False): n = max(n, 1)
        if c.op and (c.op.startswith("s_movrel") or "addtid" in c.op): n = max(n, 1)
    if p.kind == "vmem" and p.store_data:
        if c.kind == "valu" and p.store_data & c.wr: n = max(n, 2)
        elif c.kind in ("mfma", "ds", "vmem") and p.store_data & c.wr: n = max(n, 1)
    return n

MAXD = 13

def finalize(lines, verbose=False):
    ins = [Ins(l) for l in lines]
    labels = {x.label: i for i, x in enumerate(ins) if x.label}
    preds = [[] for _ in ins]
    for i, x in enumerate(ins):
        if x.op in ("s_branch",) or (x.op and x.op.startswith("s_cbranch")):
            t = x.ops[0]
            if t in labels: preds[labels[t]].append(i)
        if i + 1 < len(ins) and x.op not in ("s_branch", "s_endpgm", "s_setpc_b64"):
            preds[i + 1].append(i)
    pad = [0] * len(ins)
    total = 0
    for i, c in enumerate(ins):
        if c.op is None or c.kind == "other": continue
        worst = 0
        stack = [(p, 0) for p in preds[i]]
        seen = {}
        while stack:
            j, d = stack.pop()
            if d >= MAXD: continue
            if seen.get(j, 99) <= d: continue
            seen[j] = d
            p = ins[j]
            if p.op is not None:
                n = need(p, c)
                if n > d: worst = max(worst, n - d)
            nd = d + p.states() + pad[j]
            for q in preds[j]: stack.append((q, nd))
        if worst > 0:
            if verbose: print(f"nop {worst} before: {c.text.strip()}")
            pad[i] = worst
            total += worst
    out = []
    for i, x in enumerate(ins):
        if pad[i]: out.append(f"    s_nop {pad[i]-1}")
        out.append(x.text)
    return out, total
```

```python
import sys, struct, math
from asmlib import finalize

NAME = "gated_mix__softmax_full_mha__mixer_s_mlp__prompt"
MB = 1 << 20
QF, KVF, HF = 0, 2 * MB, 6 * MB
W2F, WOF, W3F, W4F = 8 * MB, 8 * MB + 512 * 1024, 9 * MB, 11 * MB
CS3 = 13 * MB
X1F, ST2, H3F, OF = 14 * MB, 16 * MB, 17 * MB, 24 * MB
WS_BYTES = 32 * MB

def f2u(x):
    return struct.unpack("<I", struct.pack("<f", x))[0]
LOG2E = 1.4426950408889634
GC2 = -2.0 * math.sqrt(2.0 / math.pi) * LOG2E
GC1 = GC2 * 0.044715
QSCALE = 0.25 * LOG2E

class K:
    def __init__(self, name):
        self.name = name; self.L = []
    def __call__(self, s):
        for line in s.strip("\n").split("\n"):
            line = line.strip()
            if not line: continue
            if line.endswith(":") or line.startswith("."):
                self.L.append(line)
            else:
                self.L.append("    " + line)
    def lab(self, l):
        return f"L_{self.name}_{l}"

def vr(b, n): return f"v[{b}:{b+n-1}]"
def sr(b, n): return f"s[{b}:{b+n-1}]"

def load_kernargs(k):
    k(f"""
    s_load_dwordx16 s[4:19], s[0:1], 0
    s_load_dwordx8 s[20:27], s[0:1], 64
    """)
PX, PWQKV, PWO, PW1, PW2, PW3, PW4, PG, POUT, PDBG, PWS = 4, 6, 8, 12, 14, 16, 18, 20, 22, 24, 26

def srd(k, d, p, nbytes):
    k(f"""
    s_mov_b32 s{d}, s{p}
    s_mov_b32 s{d+1}, s{p+1}
    s_mov_b32 s{d+2}, {nbytes:#x}
    s_mov_b32 s{d+3}, 0x00020000
    """)

def gelu_regs(k, regs, tmp, vc1, vc2, vsig):
    n = len(regs)
    for r, t in zip(regs, tmp): k(f"v_mul_f32 v{t}, v{r}, v{r}")
    for r, t in zip(regs, tmp): k(f"v_fma_f32 v{t}, v{t}, v{vc1}, v{vc2}")
    for r, t in zip(regs, tmp): k(f"v_mul_f32 v{t}, v{t}, v{r}")
    for r, t in zip(regs, tmp): k(f"v_exp_f32 v{t}, v{t}")
    for r, t in zip(regs, tmp): k(f"v_fma_f32 v{t}, v{t}, v{vsig}, v{vsig}")
    for r, t in zip(regs, tmp): k(f"v_rcp_f32 v{t}, v{t}")
    for r, t in zip(regs, tmp): k(f"v_mul_f32 v{r}, v{r}, v{t}")

def gen_k1():
    k = K("k1")
    XB, WB, RB = 0, 65536, 131072
    SX, SW, SWS = 28, 32, 36
    vlane, vXd, vWd, vXr, vWr = 1, 2, 6, 10, 14
    vones = 15
    vs1, vs2, vcs = 16, 17, 18
    FR = 20
    ACC = 64
    T = 128
    k(f"""
    s_cmp_ge_u32 s2, 256
    s_cbranch_scc1 {k.lab('end')}
    """)
    load_kernargs(k)
    k(f"""
    v_and_b32 v{vlane}, 63, v0
    v_lshrrev_b32 v2, 6, v0
    s_nop 0
    v_readfirstlane_b32 s40, v2
    s_and_b32 s41, s2, 7
    s_lshr_b32 s42, s2, 3                ; local 0..31
    s_and_b32 s43, s41, 3
    s_lshl_b32 s43, s43, 2
    s_and_b32 s44, s42, 3
    s_add_u32 s43, s43, s44              ; tb
    s_lshr_b32 s44, s41, 2
    s_lshl_b32 s44, s44, 3
    s_lshr_b32 s45, s42, 2
    s_add_u32 s44, s44, s45              ; fb
    s_waitcnt lgkmcnt(0)
    """)
    srd(k, SWS, PWS, WS_BYTES)
    k(f"""
    s_cmp_eq_u32 s40, 4
    s_cbranch_scc1 {k.lab('repack')}
    """)
    srd(k, SX, PX, 2048 * 1024)
    k(f"""
    s_mov_b32 s{SW+2}, {512*3072:#x}
    s_mov_b32 s46, 3072
    s_lshl_b32 s47, s40, 10
    s_cmp_eq_u32 s40, 3
    s_cselect_b32 s{SW}, s{PW1}, s{PWQKV}
    s_cselect_b32 s{SW+1}, s{PW1+1}, s{PWQKV+1}
    s_cselect_b32 s{SW+2}, {512*1024:#x}, s{SW+2}
    s_mov_b32 s{SW+3}, 0x00020000
    s_cselect_b32 s46, 1024, s46
    s_cselect_b32 s47, 0, s47
    s_lshl_b32 s48, s44, 6               ; fb*32*2
    s_add_u32 s47, s47, s48
    s_lshl_b32 s49, s46, 6
    s_lshl_b32 s50, s43, 2
    s_add_u32 s50, s50, s40
    s_lshl_b32 s51, s50, 15
    s_lshl_b32 s52, s40, 12
    v_lshrrev_b32 v{T}, 3, v{vlane}          ; i/8
    v_lshlrev_b32 v{T}, 10, v{T}
    v_lshrrev_b32 v{T+1}, 4, v{vlane}        ; i/16
    v_and_b32 v{T+2}, 7, v{vlane}
    v_xor_b32 v{T+1}, v{T+1}, v{T+2}
    v_lshl_add_u32 v{vXd}, v{T+1}, 4, v{T}
    v_xor_b32 v{vXd+1}, 64, v{vXd}
    v_add_u32 v{vXd+1}, {7168}, v{vXd+1}
    v_add_u32 v{vXd+2}, {2*7168}, v{vXd}
    v_add_u32 v{vXd+3}, {2*7168}, v{vXd+1}
    v_lshrrev_b32 v{T}, 2, v{vlane}
    v_mul_lo_u32 v{T}, v{T}, s46
    v_and_b32 v{T+1}, 3, v{vlane}
    v_lshl_add_u32 v{vWd}, v{T+1}, 4, v{T}
    s_lshl_b32 s53, s46, 4
    s_sub_u32 s53, s53, 1024
    v_add_u32 v{vWd+1}, s53, v{vWd}
    v_add_u32 v{vWd+2}, s53, v{vWd+1}
    v_add_u32 v{vWd+3}, s53, v{vWd+2}
    """)
    def dma(c):
        st = c % 4
        k(f"s_add_u32 m0, s52, {XB + st*16384}")
        k(f"s_add_u32 s54, s51, {c*128}")
        for q in range(4):
            k(f"buffer_load_dwordx4 v{vXd+q}, {sr(SX,4)}, s54 offen offset:{q*1024} lds")
        k(f"s_add_u32 m0, s52, {WB + st*16384}")
        for q in range(4):
            k(f"buffer_load_dwordx4 v{vWd+q}, {sr(SW,4)}, s47 offen offset:{q*1024} lds")
        k(f"s_add_u32 s47, s47, s49")
    for c in range(4): dma(c)
    k(f"""
    v_and_b32 v{T}, 31, v{vlane}             ; t
    v_lshrrev_b32 v{T+1}, 5, v{vlane}        ; h
    v_bfe_u32 v{T+2}, v{vlane}, 1, 3         ; (t>>1)&7
    v_xor_b32 v{T+2}, v{T+2}, v{T+1}         ; ^h
    v_lshlrev_b32 v{T+3}, 7, v{T}
    v_add_u32 v{T+3}, s52, v{T+3}
    """)
    for ks in range(4):
        k(f"v_xor_b32 v{T+4}, {2*ks}, v{T+2}")
        k(f"v_lshl_add_u32 v{vXr+ks}, v{T+4}, 4, v{T+3}")
    k(f"""
    v_lshlrev_b32 v{vWr}, 9, v{T+1}          ; h*512
    v_bfe_u32 v{T}, v{vlane}, 2, 2           ; r
    v_lshl_add_u32 v{vWr}, v{T}, 6, v{vWr}
    v_bfe_u32 v{T}, v{vlane}, 4, 1           ; g2
    v_lshl_add_u32 v{vWr}, v{T}, 5, v{vWr}
    v_and_b32 v{T}, 3, v{vlane}
    v_lshl_add_u32 v{vWr}, v{T}, 3, v{vWr}
    v_add_u32 v{vWr}, {WB}, v{vWr}
    v_mov_b32 v{vones}, 0x3f803f80
    v_mov_b32 v{vs1}, 0
    v_mov_b32 v{vs2}, 0
    v_mov_b32 v{vcs}, 0
    """)
    for i in range(64): k(f"v_mov_b32 v{ACC+i}, 0")
    def rd(c, ks, s):
        st = c % 4
        b = FR + 20 * s
        k(f"ds_read_b128 {vr(b,4)}, v{vXr+ks} offset:{XB + st*16384}")
        for ft in range(4):
            for e in range(2):
                k(f"ds_read_b64_tr_b16 {vr(b+4+4*ft+2*e,2)}, v{vWr} offset:{st*16384 + ft*4096 + (4*ks+e)*256}")
    def mm(s):
        b = FR + 20 * s
        x = vr(b, 4)
        def dots(lst):
            for d in lst: k(d)
        D = []
        for i in range(4):
            D.append(f"v_dot2_f32_bf16 v{vs1}, v{b+i}, v{vones}, v{vs1}")
            D.append(f"v_dot2_f32_bf16 v{vs2}, v{b+i}, v{b+i}, v{vs2}")
            D.append(f"v_dot2_f32_bf16 v{vcs}, v{b+16+i}, v{vones}, v{vcs}")
        for ft in range(4):
            w = vr(b + 4 + 4 * ft, 4); a = vr(ACC + 16 * ft, 16)
            if ft == 2: k(f"v_mfma_f32_32x32x16_bf16 {a}, {x}, {w}, {a}")
            else:       k(f"v_mfma_f32_32x32x16_bf16 {a}, {w}, {x}, {a}")
            dots(D[3 * ft:3 * ft + 3])
    k("s_waitcnt vmcnt(24)")
    k("s_barrier")
    rd(0, 0, 0)
    cur = 0
    for c in range(8):
        for ks in range(4):
            if ks < 3:
                rd(c, ks + 1, cur ^ 1)
                k("s_waitcnt lgkmcnt(9)")
            else:
                if c < 7:
                    k(f"s_waitcnt vmcnt({8*min(2, 6-c)}) lgkmcnt(0)")
                    k("s_barrier")
                    rd(c + 1, 0, cur ^ 1)
                    if c + 4 <= 7: dma(c + 4)
                else:
                    k("s_waitcnt lgkmcnt(0)")
            mm(cur)
            cur ^= 1
    Q, KK, V, U = ACC, ACC + 16, ACC + 32, ACC + 48
    P = FR
    k(f"""
    s_lshl_b32 s55, s44, 1
    s_lshl_b32 s56, s55, 6
    s_add_u32 s56, s56, s50
    s_lshl_b32 s57, s56, 10
    s_lshl_b32 s58, s56, 11
    s_add_u32 s58, s58, {KVF}
    s_add_u32 s59, s57, {64*1024}
    s_add_u32 s60, s58, {64*2048}
    s_mov_b32 s61, {f2u(QSCALE):#x}
    v_lshlrev_b32 v{T}, 4, v{vlane}          ; lane*16
    v_and_b32 v{T+1}, 0x33, v{vlane}
    v_and_b32 v{T+2}, 4, v{vlane}
    v_lshl_add_u32 v{T+1}, v{T+2}, 1, v{T+1}
    v_bfe_u32 v{T+2}, v{vlane}, 3, 1
    v_lshl_add_u32 v{T+1}, v{T+2}, 2, v{T+1}
    v_lshlrev_b32 v{T+1}, 4, v{T+1}
    ; V address: a*(64*2048) + 1024 + h*256 + d*16
    v_bfe_u32 v{T+2}, v{vlane}, 4, 1
    v_lshlrev_b32 v{T+2}, 17, v{T+2}
    v_lshrrev_b32 v{T+3}, 5, v{vlane}
    v_lshl_add_u32 v{T+2}, v{T+3}, 8, v{T+2}
    v_and_b32 v{T+3}, 15, v{vlane}
    v_lshl_add_u32 v{T+2}, v{T+3}, 4, v{T+2}
    """)
    k(f"""
    v_mov_b32 v{T+4}, v{vs1}
    v_mov_b32 v{T+5}, v{vs2}
    v_mov_b32 v{T+6}, v{vcs}
    s_nop 1
    v_permlane32_swap_b32 v{T+4}, v{vs1}
    v_permlane32_swap_b32 v{T+5}, v{vs2}
    v_permlane32_swap_b32 v{T+6}, v{vcs}
    s_nop 1
    v_add_f32 v{vs1}, v{vs1}, v{T+4}
    v_add_f32 v{vs2}, v{vs2}, v{T+5}
    v_add_f32 v{vcs}, v{vcs}, v{T+6}
    v_and_b32 v{T+4}, 31, v{vlane}
    v_lshl_add_u32 v{T+4}, v{T+4}, 2, s52
    ds_write_b32 v{T+4}, v{vcs}
    v_lshrrev_b32 v{T+5}, 5, v{vlane}
    v_lshl_add_u32 v{T+5}, v{T+5}, 4, s52
    """)
    for i in range(16): k(f"v_mul_f32 v{Q+i}, s61, v{Q+i}")
    k("s_waitcnt lgkmcnt(0)")
    CS = T + 16
    for a in range(4): k(f"ds_read_b128 {vr(CS+4*a,4)}, v{T+5} offset:{a*32}")
    for i in range(8): k(f"v_cvt_pk_bf16_f32 v{P+i}, v{Q+2*i}, v{Q+2*i+1}")
    k(f"buffer_store_dwordx4 {vr(P,4)}, v{T}, {sr(SWS,4)}, s57 offen")
    k(f"buffer_store_dwordx4 {vr(P+4,4)}, v{T}, {sr(SWS,4)}, s59 offen")
    for i in range(8): k(f"v_cvt_pk_bf16_f32 v{P+8+i}, v{KK+2*i}, v{KK+2*i+1}")
    k(f"buffer_store_dwordx4 {vr(P+8,4)}, v{T+1}, {sr(SWS,4)}, s58 offen")
    k(f"buffer_store_dwordx4 {vr(P+12,4)}, v{T+1}, {sr(SWS,4)}, s60 offen")
    for i in range(8): k(f"v_cvt_pk_bf16_f32 v{P+16+i}, v{V+2*i}, v{V+2*i+1}")
    k(f"buffer_store_dwordx4 {vr(P+16,4)}, v{T+2}, {sr(SWS,4)}, s58 offen offset:1024")
    k(f"buffer_store_dwordx4 {vr(P+20,4)}, v{T+2}, {sr(SWS,4)}, s58 offen offset:1536")
    vmean, vsig, vc1, vc2, vrstd = T + 6, T + 7, T + 8, T + 9, T + 10
    k(f"""
    v_mul_f32 v{vmean}, {f2u(1/512):#x}, v{vs1}
    v_mul_f32 v{T+11}, v{vmean}, v{vmean}
    s_mov_b32 s62, {f2u(1/512):#x}
    v_fma_f32 v{T+11}, v{vs2}, s62, -v{T+11}
    v_max_f32 v{T+11}, 0, v{T+11}
    v_add_f32 v{T+11}, {f2u(1e-5):#x}, v{T+11}
    v_rsq_f32 v{vrstd}, v{T+11}
    v_sqrt_f32 v{vsig}, v{T+11}
    v_mul_f32 v{vc2}, {f2u(GC2):#x}, v{vrstd}
    v_mul_f32 v{vc1}, v{vrstd}, v{vrstd}
    v_mul_f32 v{vc1}, v{vc1}, v{vrstd}
    v_mul_f32 v{vc1}, {f2u(GC1):#x}, v{vc1}
    s_waitcnt lgkmcnt(0)
    """)
    for i in range(16): k(f"v_fma_f32 v{U+i}, -v{vmean}, v{CS+i}, v{U+i}")
    gelu_regs(k, list(range(U, U + 16)), list(range(CS, CS + 16)), vc1, vc2, vsig)
    k(f"""
    s_lshr_b32 s63, s44, 2
    s_and_b32 s64, s63, 1
    s_lshr_b32 s65, s63, 1
    s_add_u32 s65, s65, 1
    s_sub_u32 s66, 0, s65
    s_cmp_eq_u32 s64, 1
    s_cselect_b32 s65, s66, s65          ; shift
    s_lshl_b32 s66, s50, 5
    s_add_u32 s66, s66, s65
    v_and_b32 v{T+11}, 31, v{vlane}
    v_add_u32 v{T+11}, s66, v{T+11}          ; t + shift
    v_cmp_gt_u32 vcc, 2048, v{T+11}
    v_and_b32 v{T+11}, 2047, v{T+11}
    v_lshrrev_b32 v{T+12}, 5, v{T+11}
    v_lshlrev_b32 v{T+12}, 15, v{T+12}
    v_and_b32 v{T+11}, 31, v{T+11}
    v_lshl_add_u32 v{T+12}, v{T+11}, 4, v{T+12}
    v_and_b32 v{T+11}, 32, v{vlane}
    v_lshl_add_u32 v{T+12}, v{T+11}, 4, v{T+12}
    s_lshl_b32 s67, s44, 11
    s_add_u32 s67, s67, {HF}
    """)
    for i in range(8): k(f"v_cvt_pk_bf16_f32 v{P+24+i}, v{U+2*i}, v{U+2*i+1}")
    for i in range(8): k(f"v_cndmask_b32 v{P+24+i}, 0, v{P+24+i}, vcc")
    k(f"buffer_store_dwordx4 {vr(P+24,4)}, v{T+12}, {sr(SWS,4)}, s67 offen")
    k(f"buffer_store_dwordx4 {vr(P+28,4)}, v{T+12}, {sr(SWS,4)}, s67 offen offset:1024")
    k("s_endpgm")
    k(f"{k.lab('repack')}:")
    k(f"""
    s_cmp_lt_u32 s2, 112
    s_cbranch_scc1 {k.lab('rp_w3')}
    s_cmp_lt_u32 s2, 224
    s_cbranch_scc1 {k.lab('rp_w4')}
    ; W2 / Wo
    s_sub_u32 s41, s2, 224
    s_mov_b32 s49, {WOF:#x}
    s_cmp_lt_u32 s41, 16
    s_cselect_b32 s{SW}, s{PW2}, s{PWO}
    s_cselect_b32 s{SW+1}, s{PW2+1}, s{PWO+1}
    s_cselect_b32 s49, {W2F:#x}, s49
    s_mov_b32 s{SW+2}, {512*1024:#x}
    s_and_b32 s41, s41, 15
    s_lshr_b32 s42, s41, 3               ; kr
    s_and_b32 s43, s41, 7                ; fp
    s_mov_b32 s46, 1024
    s_lshl_b32 s47, s42, 18
    s_mov_b32 s48, 16
    s_mov_b32 s50, {32*1024}
    s_lshl_b32 s44, s42, 14
    s_mov_b32 s51, -1
    s_branch {k.lab('rp_go')}
{k.lab('rp_w3')}:
    s_mov_b32 s{SW}, s{PW3}
    s_mov_b32 s{SW+1}, s{PW3+1}
    s_mov_b32 s{SW+2}, {512*3584:#x}
    s_mul_i32 s42, s2, 2341
    s_lshr_b32 s42, s42, 16
    s_mul_i32 s43, s42, 28
    s_sub_u32 s43, s2, s43               ; fp
    s_mov_b32 s46, 3584
    s_mul_i32 s47, s42, {128*3584}
    s_mov_b32 s48, 8
    s_mov_b32 s49, {W3F:#x}
    s_mov_b32 s50, {32*1024}
    s_lshl_b32 s44, s42, 13
    s_lshl_b32 s51, s43, 11
    s_lshr_b32 s45, s42, 1
    s_lshl_b32 s45, s45, 9               ; (p>>1)*32*16
    s_add_u32 s51, s51, s45
    s_and_b32 s45, s42, 1
    s_lshl_b32 s45, s45, 3
    s_add_u32 s51, s51, s45
    s_add_u32 s51, s51, {CS3:#x}
    s_branch {k.lab('rp_go')}
{k.lab('rp_w4')}:
    s_mov_b32 s{SW}, s{PW4}
    s_mov_b32 s{SW+1}, s{PW4+1}
    s_mov_b32 s{SW+2}, {1792*1024:#x}
    s_sub_u32 s41, s2, 112
    s_lshr_b32 s42, s41, 3
    s_and_b32 s43, s41, 7
    s_mov_b32 s46, 1024
    s_lshl_b32 s47, s42, 17
    s_mov_b32 s48, 8
    s_mov_b32 s49, {W4F:#x}
    s_mov_b32 s50, {112*1024}
    s_lshl_b32 s44, s42, 13
    s_mov_b32 s51, -1
{k.lab('rp_go')}:
    s_mov_b32 s{SW+3}, 0x00020000
    s_lshl_b32 s45, s43, 7
    s_add_u32 s47, s47, s45
    s_lshl_b32 s45, s43, 1
    s_mul_i32 s45, s45, s50
    s_add_u32 s49, s49, s45
    s_add_u32 s49, s49, s44
    s_add_u32 s52, s49, s50
    v_lshrrev_b32 v{T}, 2, v{vlane}
    v_mul_lo_u32 v{T}, v{T}, s46
    v_and_b32 v{T+1}, 3, v{vlane}
    v_lshl_add_u32 v2, v{T+1}, 4, v{T}
    s_lshl_b32 s53, s46, 4               ; 16 rows
    s_mov_b32 s54, {RB}
    s_mov_b32 s55, s48
    s_add_u32 s56, s47, 0
{k.lab('rp_ld')}:
    s_mov_b32 m0, s54
    s_add_u32 s57, s56, 64
    buffer_load_dwordx4 v2, {sr(SW,4)}, s56 offen lds
    s_add_u32 m0, s54, 1024
    s_add_u32 s54, s54, 2048
    buffer_load_dwordx4 v2, {sr(SW,4)}, s57 offen lds
    s_add_u32 s56, s56, s53
    s_sub_u32 s55, s55, 1
    s_cmp_lg_u32 s55, 0
    s_cbranch_scc1 {k.lab('rp_ld')}
    v_lshrrev_b32 v{T+1}, 5, v{vlane}
    v_lshlrev_b32 v4, 8, v{T+1}
    v_bfe_u32 v{T}, v{vlane}, 2, 2
    v_lshl_add_u32 v4, v{T}, 6, v4
    v_bfe_u32 v{T}, v{vlane}, 4, 1
    v_lshl_add_u32 v4, v{T}, 5, v4
    v_and_b32 v{T}, 3, v{vlane}
    v_lshl_add_u32 v4, v{T}, 3, v4
    v_add_u32 v4, {RB}, v4
    v_lshlrev_b32 v5, 4, v{vlane}
    v_mov_b32 v{vones}, 0x3f803f80
    v_mov_b32 v6, 0
    v_mov_b32 v7, 0
    s_lshr_b32 s55, s48, 3
    s_barrier
    s_barrier
    s_barrier
    s_waitcnt vmcnt(0)
    s_mov_b32 s58, 4
{k.lab('rp_int')}:
    s_mov_b32 s59, s55
{k.lab('rp_pair')}:
    """)
    for u in range(2):
        for a in range(2):
            for e in range(2):
                k(f"ds_read_b64_tr_b16 {vr(20+8*u+4*a+2*e,2)}, v4 offset:{u*2048 + a*1024 + e*512}")
    k("v_add_u32 v4, 4096, v4")
    k("s_waitcnt lgkmcnt(0)")
    for u in range(2):
        k(f"buffer_store_dwordx4 {vr(20+8*u,4)}, v5, {sr(SWS,4)}, s49 offen offset:{u*1024}")
        k(f"buffer_store_dwordx4 {vr(24+8*u,4)}, v5, {sr(SWS,4)}, s52 offen offset:{u*1024}")
    for u in range(2):
        for i in range(4):
            k(f"v_dot2_f32_bf16 v6, v{20+8*u+i}, v{vones}, v6")
            k(f"v_dot2_f32_bf16 v7, v{24+8*u+i}, v{vones}, v7")
    k(f"""
    s_add_u32 s49, s49, 2048
    s_add_u32 s52, s52, 2048
    s_waitcnt vmcnt(0)
    s_sub_u32 s59, s59, 1
    s_cmp_lg_u32 s59, 0
    s_cbranch_scc1 {k.lab('rp_pair')}
    s_barrier
    s_sub_u32 s58, s58, 1
    s_cmp_lg_u32 s58, 0
    s_cbranch_scc1 {k.lab('rp_int')}
    s_cmp_eq_u32 s51, -1
    s_cbranch_scc1 {k.lab('end')}
    v_permlane32_swap_b32 v6, v7
    s_nop 1
    v_add_f32 v6, v6, v7
    v_cvt_pk_bf16_f32 v9, v6, 0
    v_lshlrev_b32 v7, 16, v9
    v_sub_f32 v7, v6, v7                     ; residual
    v_cvt_pk_bf16_f32 v8, v6, v7
    v_and_b32 v5, 31, v{vlane}
    v_lshlrev_b32 v5, 4, v5
    v_lshrrev_b32 v7, 5, v{vlane}
    v_lshl_add_u32 v5, v7, 10, v5
    buffer_store_dwordx2 v[8:9], v5, {sr(SWS,4)}, s51 offen
{k.lab('end')}:
    s_endpgm
    """)
    return k, dict(vgpr=160, block=320, grid=256, lds=163840)


def stream_gemm(k, streams, nks, D, RB, mfmas, srd_, voff, tail=None):
    n = len(streams)
    def issue(s):
        for i, sg in enumerate(streams):
            k(f"buffer_load_dwordx4 {vr(RB + (s % D)*4*n + 4*i, 4)}, v{voff}, {sr(srd_,4)}, s{sg} offen offset:{(s%4)*1024}")
        if s % 4 == 3:
            for sg in streams: k(f"s_add_u32 s{sg}, s{sg}, 4096")
    for s in range(min(D, nks)): issue(s)
    if tail: tail()
    for s in range(nks):
        k(f"s_waitcnt vmcnt({n*min(D-1, nks-1-s)})")
        mfmas([RB + (s % D)*4*n + 4*i for i in range(n)])
        if s + D < nks: issue(s + D)

def prologue(k, ngrid):
    k(f"""
    s_cmp_ge_u32 s2, {ngrid}
    s_cbranch_scc1 {k.lab('end')}
    """)
    load_kernargs(k)
    k(f"""
    v_and_b32 v1, 63, v0
    v_lshrrev_b32 v2, 6, v0
    s_nop 0
    v_readfirstlane_b32 s40, v2
    v_lshlrev_b32 v2, 4, v1              ; lane*16
    s_waitcnt lgkmcnt(0)
    """)

def gen_w2():
    k = K("k2")
    SWS, SX, SG = 36, 28, 32
    prologue(k, 256)
    srd(k, SWS, PWS, WS_BYTES); srd(k, SX, PX, 2048 * 1024); srd(k, SG, PG, 1024)
    ACC, XR, GR, RB, T = 4, 20, 28, 48, 36
    k(f"""
    s_and_b32 s41, s2, 7
    s_lshl_b32 s41, s41, 2
    s_bfe_u32 s42, s2, 0x20003           ; (id>>3)&3
    s_add_u32 s41, s41, s42              ; tb 0..31
    s_lshr_b32 s42, s2, 5                ; fb 0..7
    s_lshl_b32 s41, s41, 1
    s_and_b32 s43, s40, 1
    s_add_u32 s41, s41, s43              ; tt
    s_lshl_b32 s42, s42, 1
    s_lshr_b32 s43, s40, 1
    s_add_u32 s42, s42, s43              ; ft
    s_lshl_b32 s44, s42, 15
    s_add_u32 s44, s44, {W2F:#x}
    s_lshl_b32 s45, s41, 15
    s_add_u32 s45, s45, {HF:#x}
    v_and_b32 v{T}, 31, v1
    v_lshlrev_b32 v{T}, 10, v{T}
    v_lshrrev_b32 v{T+1}, 5, v1
    v_lshlrev_b32 v{T+1}, 3, v{T+1}          ; h*8 bytes
    v_add_u32 v{T}, v{T}, v{T+1}
    s_lshl_b32 s46, s41, 15
    s_lshl_b32 s47, s42, 6
    s_add_u32 s46, s46, s47
    """)
    for a in range(4):
        k(f"buffer_load_dwordx2 {vr(XR+2*a,2)}, v{T}, {sr(SX,4)}, s46 offen offset:{a*16}")
    for a in range(4):
        k(f"buffer_load_dwordx2 {vr(GR+2*a,2)}, v{T+1}, {sr(SG,4)}, s47 offen offset:{a*16}")
    def zero():
        for i in range(16): k(f"v_mov_b32 v{ACC+i}, 0")
    def mf(r): k(f"v_mfma_f32_32x32x16_bf16 {vr(ACC,16)}, {vr(r[0],4)}, {vr(r[1],4)}, {vr(ACC,16)}")
    stream_gemm(k, [44, 45], 32, 10, RB, mf, SWS, 2, tail=zero)
    P = RB
    k(f"v_mov_b32 v{T+2}, 0\nv_mov_b32 v{T+3}, 0\nv_mov_b32 v{T+4}, 0\nv_mov_b32 v{T+5}, 0\nv_mov_b32 v{T+6}, 0x3f803f80")
    for i in range(8): k(f"v_dot2_f32_bf16 v{T+4}, v{XR+i}, v{GR+i}, v{T+4}")
    for i in range(8):
        k(f"v_lshlrev_b32 v{P+16+2*i}, 16, v{XR+i}")
        k(f"v_and_b32 v{P+16+2*i+1}, 0xffff0000, v{XR+i}")
    for i in range(16): k(f"v_add_f32 v{ACC+i}, v{ACC+i}, v{P+16+i}")
    for i in range(8): k(f"v_cvt_pk_bf16_f32 v{P+i}, v{ACC+2*i}, v{ACC+2*i+1}")
    k(f"""
    s_lshl_b32 s46, s41, 15
    s_lshl_b32 s47, s42, 11
    s_add_u32 s46, s46, s47
    s_add_u32 s46, s46, {X1F:#x}
    buffer_store_dwordx4 {vr(P,4)}, v2, {sr(SWS,4)}, s46 offen
    buffer_store_dwordx4 {vr(P+4,4)}, v2, {sr(SWS,4)}, s46 offen offset:1024
    """)
    for i in range(8):
        k(f"v_dot2_f32_bf16 v{T+2}, v{P+i}, v{T+6}, v{T+2}")
        k(f"v_dot2_f32_bf16 v{T+3}, v{P+i}, v{P+i}, v{T+3}")
    k(f"""
    v_mov_b32 v{T+8}, v{T+2}
    v_mov_b32 v{T+9}, v{T+3}
    v_mov_b32 v{T+10}, v{T+4}
    v_permlane32_swap_b32 v{T+8}, v{T+2}
    v_permlane32_swap_b32 v{T+9}, v{T+3}
    v_permlane32_swap_b32 v{T+10}, v{T+4}
    s_nop 1
    v_add_f32 v{T+8}, v{T+8}, v{T+2}
    v_add_f32 v{T+9}, v{T+9}, v{T+3}
    v_add_f32 v{T+10}, v{T+10}, v{T+4}
    v_mov_b32 v{T+11}, 0
    s_lshl_b32 s46, s41, 13
    s_lshl_b32 s47, s42, 9
    s_add_u32 s46, s46, s47
    s_add_u32 s46, s46, {ST2:#x}
    s_mov_b32 exec_hi, 0
    buffer_store_dwordx4 {vr(T+8,4)}, v2, {sr(SWS,4)}, s46 offen
{k.lab('end')}:
    s_endpgm
    """)
    return k, dict(vgpr=128, block=256, grid=256, lds=0)

def gen_w3():
    k = K("k3")
    SWS = 36
    prologue(k, 224)
    srd(k, SWS, PWS, WS_BYTES)
    ACC, STR, CSR, RB, T = 4, 68, 100, 128, 108
    D = 7
    k(f"""
    s_and_b32 s41, s2, 7
    s_lshl_b32 s41, s41, 1
    s_bfe_u32 s42, s2, 0x10003
    s_add_u32 s41, s41, s42              ; tb
    s_lshr_b32 s42, s2, 4                ; fb
    s_lshl_b32 s41, s41, 2
    s_and_b32 s43, s40, 1
    s_lshl_b32 s43, s43, 1
    s_add_u32 s41, s41, s43              ; tt0
    s_lshl_b32 s42, s42, 2
    s_and_b32 s43, s40, 2
    s_add_u32 s42, s42, s43              ; ft0
    s_lshl_b32 s44, s42, 15
    s_add_u32 s44, s44, {W3F:#x}
    s_add_u32 s45, s44, 0x8000
    s_lshl_b32 s46, s41, 15
    s_add_u32 s46, s46, {X1F:#x}
    s_add_u32 s47, s46, 0x8000
    v_and_b32 v{T}, 31, v1
    v_lshlrev_b32 v{T}, 4, v{T}
    v_lshrrev_b32 v{T+1}, 5, v1
    v_lshl_add_u32 v{T}, v{T+1}, 12, v{T}
    s_lshl_b32 s48, s41, 13
    s_add_u32 s48, s48, {ST2:#x}
    s_add_u32 s49, s48, 0x2000
    s_lshl_b32 s50, s42, 10
    s_add_u32 s50, s50, {CS3:#x}
    """)
    for i in range(2):
        for e in range(8):
            k(f"buffer_load_dwordx2 {vr(STR+16*i+2*e,2)}, v{T}, {sr(SWS,4)}, s{48+i} offen offset:{e*512}")
    for j in range(2):
        k(f"buffer_load_dwordx4 {vr(CSR+4*j,4)}, v2, {sr(SWS,4)}, s50 offen offset:{j*1024}")
    def zero():
        for i in range(64): k(f"v_mov_b32 v{ACC+i}, 0")
    def acc(j, i): return vr(ACC + 16 * (2 * j + i), 16)
    def mf(r):
        for j in range(2):
            for i in range(2):
                k(f"v_mfma_f32_32x32x16_bf16 {acc(j,i)}, {vr(r[j],4)}, {vr(r[2+i],4)}, {acc(j,i)}")
    stream_gemm(k, [44, 45, 46, 47], 32, D, RB, mf, SWS, 2, tail=zero)
    MB_ = RB
    CST = RB + 8
    for i in range(2):
        b = STR + 16 * i
        for e in range(1, 8):
            k(f"v_add_f32 v{b}, v{b}, v{b+2*e}")
            k(f"v_add_f32 v{b+1}, v{b+1}, v{b+2*e+1}")
        k(f"""
        v_mov_b32 v{b+2}, v{b}
        v_mov_b32 v{b+3}, v{b+1}
        v_permlane32_swap_b32 v{b+2}, v{b}
        v_permlane32_swap_b32 v{b+3}, v{b+1}
        s_nop 1
        v_add_f32 v{b}, v{b}, v{b+2}
        v_add_f32 v{b+1}, v{b+1}, v{b+3}
        v_mul_f32 v{b}, {f2u(-1/512):#x}, v{b}          ; -mean
        v_mul_f32 v{b+2}, v{b}, v{b}
        v_mul_f32 v{b+1}, {f2u(1/512):#x}, v{b+1}
        v_sub_f32 v{b+1}, v{b+1}, v{b+2}
        v_max_f32 v{b+1}, 0, v{b+1}
        v_add_f32 v{b+1}, {f2u(1e-5):#x}, v{b+1}
        v_rsq_f32 v{b+3}, v{b+1}
        v_sqrt_f32 v{CST+3*i+2}, v{b+1}
        v_cvt_pk_bf16_f32 v{MB_+4*i}, v{b}, v{b}
        v_and_b32 v{b+2}, 0xffff0000, v{MB_+4*i}
        v_sub_f32 v{b+2}, v{b}, v{b+2}
        v_cvt_pk_bf16_f32 v{MB_+4*i+1}, v{b+2}, 0       ; ml | 0
        v_mov_b32 v{MB_+4*i+2}, v{MB_+4*i}
        v_mov_b32 v{MB_+4*i+3}, v{MB_+4*i+1}
        v_mul_f32 v{CST+3*i+1}, {f2u(GC2):#x}, v{b+3}
        v_mul_f32 v{b+2}, v{b+3}, v{b+3}
        v_mul_f32 v{b+2}, v{b+2}, v{b+3}
        v_mul_f32 v{CST+3*i}, {f2u(GC1):#x}, v{b+2}
        """)
    mf([CSR, CSR + 4, MB_, MB_ + 4])
    TMP = RB + 16; P = RB + 32
    k(f"""
    s_mul_i32 s44, s41, {112*1024}
    s_lshl_b32 s45, s42, 11
    s_add_u32 s44, s44, s45
    s_add_u32 s44, s44, {H3F:#x}
    s_add_u32 s45, s44, {112*1024}
    """)
    for j in range(2):
        for i in range(2):
            a = ACC + 16 * (2 * j + i)
            gelu_regs(k, list(range(a, a + 16)), list(range(TMP, TMP + 16)), CST + 3 * i, CST + 3 * i + 1, CST + 3 * i + 2)
            p = P + 8 * (2 * j + i)
            for q in range(8): k(f"v_cvt_pk_bf16_f32 v{p+q}, v{a+2*q}, v{a+2*q+1}")
            k(f"buffer_store_dwordx4 {vr(p,4)}, v2, {sr(SWS,4)}, s{44+i} offen offset:{j*2048}")
            k(f"buffer_store_dwordx4 {vr(p+4,4)}, v2, {sr(SWS,4)}, s{44+i} offen offset:{j*2048+1024}")
    k(f"{k.lab('end')}:\ns_endpgm")
    return k, dict(vgpr=RB + D * 16, block=256, grid=224, lds=0)

def gen_attn():
    k = K("k4")
    SWS = 36
    prologue(k, 256)
    srd(k, SWS, PWS, WS_BYTES)
    Qr, O, C, S0, KF, VF = 4, 8, 24, 40, 72, 80
    vidx, vKa, vVa, T = 96, 97, 98, 100
    k(f"""
    s_and_b32 s41, s2, 7
    s_lshl_b32 s41, s41, 2
    s_bfe_u32 s42, s2, 0x20003
    s_add_u32 s41, s41, s42              ; head
    s_lshr_b32 s42, s2, 5                ; q block
    s_lshl_b32 s42, s42, 3
    s_add_u32 s42, s42, s40              ; tt
    s_lshl_b32 s43, s41, 6
    s_add_u32 s43, s43, s42
    s_lshl_b32 s43, s43, 10
    buffer_load_dwordx4 {vr(Qr,4)}, v2, {sr(SWS,4)}, s43 offen
    s_lshl_b32 s44, s40, 14
    s_lshl_b32 s45, s41, 17
    s_add_u32 s45, s45, s44
    s_add_u32 s45, s45, {KVF:#x}
    """)
    for g in range(4):
        k(f"s_add_u32 m0, s44, {g*4096}")
        k(f"s_add_u32 s46, s45, {g*4096}")
        for q in range(4):
            k(f"buffer_load_dwordx4 v2, {sr(SWS,4)}, s46 offen offset:{q*1024} lds")
    k(f"""
    v_mov_b32 v{vidx}, 0xdddddddd
    v_add_u32 v{vKa}, s44, v2
    v_and_b32 v{T}, 15, v1
    v_lshlrev_b32 v{T}, 4, v{T}
    v_lshrrev_b32 v{T+1}, 5, v1
    v_lshl_add_u32 v{T}, v{T+1}, 8, v{T}
    v_add_u32 v{vVa}, s44, v{T}
    s_mov_b32 s48, 0x0000ffff
    s_mov_b32 s49, 0x0000ffff
    s_mov_b32 s50, 0
    """)
    for i in range(16): k(f"v_mov_b32 v{VF+i}, 0x3f803f80")
    def S(b): return vr(S0 + 16 * b, 16)
    def rdK(slot, off): k(f"ds_read_b128 {vr(KF+4*slot,4)}, v{vKa} offset:{off}")
    def rdV(slot, off):
        k("s_mov_b64 exec, s[48:49]")
        k(f"ds_read_b128 {vr(VF+8*slot,4)}, v{vVa} offset:{off+1024}")
        k(f"ds_read_b128 {vr(VF+8*slot+4,4)}, v{vVa} offset:{off+1536}")
        k("s_mov_b64 exec, -1")
    def smf(b, half, slot):
        k(f"v_smfmac_f32_32x32x32_bf16 {vr(O,16)}, {vr(VF+8*slot+4*half,4)}, {vr(S0+16*b+8*half,8)}, v{vidx}")
    def smm(b, slot): k(f"v_mfma_f32_32x32x16_bf16 {S(b)}, {vr(KF+4*slot,4)}, {vr(Qr,4)}, {vr(C,16)}")
    def maxred(src, dst, first):
        if first:
            k(f"v_max3_f32 v{dst}, v{src}, v{src+1}, v{src+2}")
            rest = list(range(3, 15, 2));
            for i in rest: k(f"v_max3_f32 v{dst}, v{dst}, v{src+i}, v{src+i+1}")
            k(f"v_max_f32 v{dst}, v{dst}, v{src+15}")
        else:
            for i in range(0, 16, 2): k(f"v_max3_f32 v{dst}, v{dst}, v{src+i}, v{src+i+1}")
    def setC(m):
        k(f"""
        v_mov_b32 v{T+1}, v{m}
        v_permlane32_swap_b32 v{T+1}, v{m}
        s_nop 1
        v_max_f32 v{m}, v{m}, v{T+1}
        """)
        for i in range(16): k(f"v_sub_f32 v{C+i}, 0, v{m}")
    k("s_waitcnt vmcnt(14)")
    rdK(0, 0)
    k("s_waitcnt lgkmcnt(0)")
    k(f"v_mfma_f32_32x32x16_bf16 {S(0)}, {vr(KF,4)}, {vr(Qr,4)}, 0")
    maxred(S0, T, True)
    setC(T)
    k("s_waitcnt vmcnt(0)")
    k(f"{k.lab('main')}:")
    for i in range(16): k(f"v_mov_b32 v{O+i}, 0")
    for i in range(8): k(f"v_mov_b32 v{S0+16+8+i}, 0")
    rdK(0, 0); rdK(1, 2048); rdV(0, 0); rdV(1, 0)
    k("s_waitcnt lgkmcnt(0)")
    smm(0, 0)
    k("s_mov_b32 s47, 0")
    k(".p2align 6")
    k(f"{k.lab('loop')}:")
    for t in range(8):
        cur = t % 2; oth = cur ^ 1
        E = lambda i: k(f"v_exp_f32 v{S0+16*cur+i}, v{S0+16*cur+i}")
        E(0); E(1)
        smf(oth, 1, oth)
        E(2)
        if t == 6:
            k(f"""
            s_cmp_lg_u32 s47, 0
            s_cbranch_scc1 {k.lab('nobar')}
            s_cmp_lg_u32 s50, 0
            s_cbranch_scc1 {k.lab('nobar')}
            s_barrier
{k.lab('nobar')}:
            v_add_u32 v{vKa}, 0x4000, v{vKa}
            v_and_b32 v{vKa}, 0x1ffff, v{vKa}
            """)
        if t == 7:
            k(f"v_add_u32 v{vVa}, 0x4000, v{vVa}\nv_and_b32 v{vVa}, 0x1ffff, v{vVa}")
        E(3); E(4)
        k("s_waitcnt lgkmcnt(0)")
        smm(oth, oth)
        rdV(oth, ((t + 1) % 8) * 2048)
        E(5)
        rdK(cur, ((t + 2) % 8) * 2048)
        for i in range(6, 11): E(i)
        smf(cur, 0, cur)
        for i in range(11, 16): E(i)
    k(f"""
    s_add_u32 s47, s47, 1
    s_cmp_lt_u32 s47, 8
    s_cbranch_scc1 {k.lab('loop')}
    """)
    smf(1, 1, 1)
    k("s_waitcnt lgkmcnt(0)")
    k(f"""
    s_cmp_lg_u32 s50, 0
    s_cbranch_scc1 {k.lab('fin')}
    s_mov_b32 s51, {f2u(2.0**64):#x}
    v_max3_f32 v{T}, abs(v{O}), abs(v{O+1}), abs(v{O+2})
    v_max3_f32 v{T}, v{T}, abs(v{O+3}), abs(v{O+4})
    v_max3_f32 v{T}, v{T}, abs(v{O+5}), abs(v{O+6})
    v_add_f32 v{T+1}, v{O}, v{O+1}
    v_add_f32 v{T+2}, v{O+2}, v{O+3}
    v_add_f32 v{T+3}, v{O+4}, v{O+5}
    v_add_f32 v{T+4}, v{O+6}, v{O+7}
    v_max_f32 v{T}, v{T}, abs(v{O+7})
    v_add_f32 v{T+1}, v{T+1}, v{T+2}
    v_add_f32 v{T+3}, v{T+3}, v{T+4}
    v_mov_b32 v{T+2}, 0x7f000000
    v_add_f32 v{T+1}, v{T+1}, v{T+3}
    v_cmp_nge_f32 vcc, s51, v{O+8}           ; !(2^64 >= l)
    v_cmp_nle_f32 s[52:53], v{T}, v{T+2}
    v_cmp_u_f32 s[54:55], v{T+1}, v{T+1}
    s_or_b64 vcc, vcc, s[52:53]
    s_or_b64 vcc, vcc, s[54:55]
    s_cbranch_vccz {k.lab('fin')}
    s_mov_b32 s50, 1
    v_mov_b32 v{T}, 0xff800000
    s_mov_b32 s47, 0
{k.lab('mx')}:
    """)
    rdK(0, 0)
    k(f"v_add_u32 v{vKa}, 0x800, v{vKa}\nv_and_b32 v{vKa}, 0x1ffff, v{vKa}")
    k("s_waitcnt lgkmcnt(0)")
    k(f"v_mfma_f32_32x32x16_bf16 {S(0)}, {vr(KF,4)}, {vr(Qr,4)}, 0")
    maxred(S0, T, False)
    k(f"""
    s_add_u32 s47, s47, 1
    s_cmp_lt_u32 s47, 64
    s_cbranch_scc1 {k.lab('mx')}
    """)
    setC(T)
    k(f"s_branch {k.lab('main')}")
    k(f"{k.lab('fin')}:")
    k(f"v_rcp_f32 v{T}, v{O+8}")
    for i in range(8): k(f"v_mul_f32 v{O+i}, v{O+i}, v{T}")
    for i in range(4): k(f"v_cvt_pk_bf16_f32 v{T+4+i}, v{O+2*i}, v{O+2*i+1}")
    k(f"""
    s_lshl_b32 s43, s42, 5
    s_add_u32 s43, s43, s41
    s_lshl_b32 s43, s43, 10
    s_add_u32 s43, s43, {OF:#x}
    buffer_store_dwordx4 {vr(T+4,4)}, v2, {sr(SWS,4)}, s43 offen
{k.lab('end')}:
    s_endpgm
    """)
    return k, dict(vgpr=112, block=512, grid=256, lds=131072)

def gen_fin():
    k = K("k5")
    SWS, SO = 36, 28
    prologue(k, 256)
    srd(k, SWS, PWS, WS_BYTES); srd(k, SO, POUT, 2048 * 1024)
    ACC, X1, GP, T, RB = 4, 68, 76, 84, 96
    D = 10
    k(f"""
    s_and_b32 s41, s2, 7
    s_lshl_b32 s41, s41, 2
    s_bfe_u32 s42, s2, 0x20003
    s_add_u32 s41, s41, s42              ; tb 0..31
    s_lshr_b32 s42, s2, 5                ; fb 0..7
    s_lshl_b32 s41, s41, 1               ; tt0
    s_lshl_b32 s42, s42, 1               ; ft0
    s_and_b32 s43, s40, 1
    s_add_u32 s50, s41, s43
    s_lshr_b32 s43, s40, 1
    s_add_u32 s51, s42, s43
    s_lshl_b32 s52, s50, 15
    s_lshl_b32 s53, s51, 11
    s_add_u32 s52, s52, s53
    s_add_u32 s52, s52, {X1F:#x}
    buffer_load_dwordx4 {vr(X1,4)}, v2, {sr(SWS,4)}, s52 offen
    buffer_load_dwordx4 {vr(X1+4,4)}, v2, {sr(SWS,4)}, s52 offen offset:1024
    v_and_b32 v{T}, 31, v1
    v_lshlrev_b32 v{T}, 4, v{T}
    v_lshrrev_b32 v{T+1}, 5, v1
    v_lshl_add_u32 v{T}, v{T+1}, 12, v{T}
    s_lshl_b32 s52, s50, 13
    s_add_u32 s52, s52, {ST2+8:#x}
    """)
    for e in range(8):
        k(f"buffer_load_dword v{GP+e}, v{T}, {sr(SWS,4)}, s52 offen offset:{e*512}")
    def zero():
        for i in range(64): k(f"v_mov_b32 v{ACC+i}, 0")
    def accb(j, i): return ACC + 16 * (2 * j + i)
    def mf(r):
        for j in range(2):
            for i in range(2):
                a = vr(accb(j, i), 16)
                k(f"v_mfma_f32_32x32x16_bf16 {a}, {vr(r[j],4)}, {vr(r[2+i],4)}, {a}")
    for w in range(1, 4):
        k(f"s_cmp_eq_u32 s40, {w}\ns_cbranch_scc1 {k.lab('w%d' % w)}")
    kr = [None, (0, 38), (38, 75), (75, 112)]
    for w in range(4):
        k(f"{k.lab('w%d' % w)}:")
        if w == 0:
            k(f"""
            s_lshl_b32 s44, s42, 15
            s_add_u32 s44, s44, {WOF:#x}
            s_add_u32 s45, s44, 0x8000
            s_lshl_b32 s46, s41, 15
            s_add_u32 s46, s46, {OF:#x}
            s_add_u32 s47, s46, 0x8000
            """)
            n = 32
        else:
            k0, k1 = kr[w]; n = k1 - k0
            k(f"""
            s_mul_i32 s44, s42, {112*1024}
            s_add_u32 s44, s44, {W4F + k0*1024:#x}
            s_add_u32 s45, s44, {112*1024}
            s_mul_i32 s46, s41, {112*1024}
            s_add_u32 s46, s46, {H3F + k0*1024:#x}
            s_add_u32 s47, s46, {112*1024}
            """)
        stream_gemm(k, [44, 45, 46, 47], n, D, RB, mf, SWS, 2, tail=zero)
        k("s_nop 7")
        for o in range(4):
            if o == w: continue
            a = accb(o >> 1, o & 1)
            for q in range(4):
                k(f"ds_write_b128 v2, {vr(a+4*q,4)} offset:{(o*4+w)*4096 + q*1024}")
        for e in range(1, 8): k(f"v_add_f32 v{GP}, v{GP}, v{GP+e}")
        k(f"""
        v_mov_b32 v{GP+1}, v{GP}
        v_permlane32_swap_b32 v{GP+1}, v{GP}
        s_nop 1
        v_add_f32 v{GP}, v{GP}, v{GP+1}
        v_mul_f32 v{GP}, {f2u(-LOG2E):#x}, v{GP}
        v_exp_f32 v{GP}, v{GP}
        v_add_f32 v{GP}, 1.0, v{GP}
        v_rcp_f32 v{GP}, v{GP}                   ; g
        v_sub_f32 v{GP+1}, 1.0, v{GP}            ; 1-g
        s_waitcnt lgkmcnt(0)
        s_barrier
        """)
        srcs = [s_ for s_ in range(4) if s_ != w]
        for n_, s_ in enumerate(srcs):
            for q in range(4):
                k(f"ds_read_b128 {vr(RB+16*n_+4*q,4)}, v2 offset:{(w*4+s_)*4096 + q*1024}")
        own = accb(w >> 1, w & 1)
        XU = RB + 48
        for i in range(8):
            k(f"v_lshlrev_b32 v{XU+2*i}, 16, v{X1+i}")
            k(f"v_and_b32 v{XU+2*i+1}, 0xffff0000, v{X1+i}")
        if w == 0:
            A = own; Bs = [RB, RB + 16, RB + 32]
        else:
            A = RB; Bs = [own, RB + 16, RB + 32]
            for i in range(16): k(f"v_add_f32 v{XU+i}, v{XU+i}, v{own+i}")
            Bs = [RB + 16, RB + 32]
        k("s_waitcnt lgkmcnt(0)")
        for b in Bs:
            for i in range(16): k(f"v_add_f32 v{XU+i}, v{XU+i}, v{b+i}")
        for i in range(16): k(f"v_mul_f32 v{XU+i}, v{XU+i}, v{GP+1}")
        for i in range(16): k(f"v_fma_f32 v{XU+i}, v{A+i}, v{GP}, v{XU+i}")
        k(f"s_branch {k.lab('st')}")
    XU = RB + 48; P = RB + 64
    k(f"{k.lab('st')}:")
    for i in range(8): k(f"v_cvt_pk_bf16_f32 v{P+i}, v{XU+2*i}, v{XU+2*i+1}")
    k(f"""
    v_and_b32 v{T}, 31, v1
    v_lshlrev_b32 v{T}, 10, v{T}
    v_lshrrev_b32 v{T+1}, 5, v1
    v_lshl_add_u32 v{T}, v{T+1}, 4, v{T}
    s_lshl_b32 s52, s50, 15
    s_lshl_b32 s53, s51, 6
    s_add_u32 s52, s52, s53
    v_permlane32_swap_b32 v{P}, v{P+2}
    v_permlane32_swap_b32 v{P+1}, v{P+3}
    v_permlane32_swap_b32 v{P+4}, v{P+6}
    v_permlane32_swap_b32 v{P+5}, v{P+7}
    s_nop 1
    buffer_store_dwordx4 {vr(P,4)}, v{T}, {sr(SO,4)}, s52 offen
    buffer_store_dwordx4 {vr(P+4,4)}, v{T}, {sr(SO,4)}, s52 offen offset:32
{k.lab('end')}:
    s_endpgm
    """)
    return k, dict(vgpr=256, block=256, grid=256, lds=65536)

KERNELS = [gen_k1, gen_w2, gen_w3, gen_attn, gen_fin]

def main():
    hdr = open("cdna_kernels/" + NAME + ".s.ref").read().split("\n")
    head = [l for l in hdr if l.startswith(";") and "@launch" not in l and "Override" not in l and "grid=ceil" not in l]
    ks = [g() for g in KERNELS]
    out = list(head)
    for k, m in ks:
        out.append(f"; @launch kernel={k.name}_kernel grid=({m['grid']},1,1) block=({m['block']},1,1) lds={m['lds']}")
    out += ['.amdgcn_target "amdgcn-amd-amdhsa--gfx950"', ".text"]
    for k, m in ks:
        body, nops = finalize(k.L, verbose="-v" in sys.argv)
        print(f"{k.name}: {len(body)} lines, {nops} auto wait states", file=sys.stderr)
        out += [f".globl {k.name}_kernel", ".p2align 8", f".type {k.name}_kernel,@function", f"{k.name}_kernel:"] + body
    out += ['.section .rodata,"a"']
    for k, m in ks:
        acc = (m["vgpr"] + 3) // 4 * 4
        out += [".p2align 6", f".amdhsa_kernel {k.name}_kernel",
                f"  .amdhsa_next_free_vgpr {m['vgpr']}", "  .amdhsa_next_free_sgpr 96",
                f"  .amdhsa_accum_offset {acc}", "  .amdhsa_group_segment_fixed_size 0",
                "  .amdhsa_kernarg_size 96", "  .amdhsa_user_sgpr_count 2",
                "  .amdhsa_user_sgpr_kernarg_segment_ptr 1", "  .amdhsa_system_sgpr_workgroup_id_x 1",
                ".end_amdhsa_kernel"]
    open("cdna_kernels/" + NAME + ".s", "w").write("\n".join(out) + "\n")

if __name__ == "__main__":
    main()
```

```python
import xp
def body(mode, depth, fl=""):
    s = """
    s_load_dwordx4 s[4:7], s[0:1], 0
    s_load_dwordx2 s[24:25], s[0:1], 16
    v_mov_b32 v127, v0
    v_and_b32 v1, 63, v0
    v_lshlrev_b32 v1, 4, v1          ; lane*16
    v_lshrrev_b32 v2, 6, v0
    s_nop 0
    v_readfirstlane_b32 s20, v2      ; wave id
    s_waitcnt lgkmcnt(0)
    s_load_dwordx4 s[28:31], s[24:25], 0
    s_mov_b32 s8, s4
    s_mov_b32 s9, s5
    s_mov_b32 s10, 0x8000000
    s_mov_b32 s11, 0x00020000
    s_mov_b32 s12, s6
    s_mov_b32 s13, s7
    s_mov_b32 s14, 0x100000
    s_mov_b32 s15, 0x00020000
    s_waitcnt lgkmcnt(0)
    s_mul_i32 s21, s2, s29           ; wg offset
    s_mul_i32 s22, s20, s30          ; wave offset
    s_add_u32 s21, s21, s22
    s_and_b32 s21, s21, s28
    s_lshl_b32 s23, s20, 14          ; lds base per wave 16KB
    s_mov_b32 m0, s23
    s_barrier
    s_memtime s[16:17]
    s_waitcnt lgkmcnt(0)
    s_mov_b32 s26, s31
L_loop_%s:
""" % (mode + str(depth) + fl.replace(" ", ""))
    for i in range(depth):
        if mode == "v":
            s += f"    buffer_load_dwordx4 v[{4+4*i}:{7+4*i}], v1, s[8:11], s21 offen {fl}\n"
        else:
            s += f"    s_add_u32 m0, s23, {(i%16)*1024}\n    s_nop 0\n    buffer_load_dwordx4 v1, s[8:11], s21 offen lds\n"
        s += "    s_add_u32 s21, s21, 1024\n    s_and_b32 s21, s21, s28\n"
        if i == depth // 2 - 1:
            s += f"    s_waitcnt vmcnt({depth//2})\n"
    s += f"    s_waitcnt vmcnt({depth//2})\n"
    s += """
    s_sub_u32 s26, s26, 1
    s_cmp_lg_u32 s26, 0
    s_cbranch_scc1 L_loop_%s
    s_waitcnt vmcnt(0)
    s_memtime s[18:19]
    s_waitcnt lgkmcnt(0)
    s_sub_u32 s18, s18, s16
    v_mov_b32 v1, s18
    s_lshl_b32 s3, s2, 4
    v_add_u32 v2, s3, v2
    v_lshlrev_b32 v2, 2, v2
    v_and_b32 v3, 63, v127
    v_cmp_eq_u32 vcc, 0, v3
    s_and_saveexec_b64 s[20:21], vcc
    buffer_store_dword v1, v2, s[12:15], 0 offen
    s_waitcnt vmcnt(0)
""" % (mode + str(depth) + fl.replace(" ", ""))
    return s
ks = [("bwv28sc1_kernel", body("v", 28, "sc1"), 128, 128, 1024), ("bwv28nt_kernel", body("v", 28, "nt"), 128, 128, 1024), ("bwv16_kernel", body("v", 16), 128, 128, 1024), ("bwv28_kernel", body("v", 28), 128, 128, 1024), ("bwl16_kernel", body("l", 16), 128, 128, 1024), ("bwl32_kernel", body("l", 32), 128, 128, 1024)]
xp.build(xp.wrap(ks), "bw")
```

```python
import xp, json
def vr(b, n): return f"v[{b}:{b+n-1}]"
Qa, Qb, Oa, Ob, Ca, Cb, Sa, Sb, KF, VF, PK = 4, 8, 12, 28, 44, 60, 76, 92, 108, 116, 136
TS = 2112
def loop(var):
    L = []; k = L.append
    for t in range(8):
        cur = t % 2; oth = cur ^ 1
        for ph, (S, So, O, Oo, Q, C) in enumerate(((Sa, Sb, Oa, Ob, Qb, Cb), (Sb, Sa, Ob, Oa, Qa, Ca))):
            E = lambda i: k(f"v_exp_f32 v{S+i}, v{S+i}")
            def rd():
                if ph == 0:
                    if var == "Am": k("s_mov_b64 exec, s[40:41]")
                    k(f"ds_read_b128 {vr(VF+8*oth,4)}, v134 offset:{t*TS+1024}"); k(f"ds_read_b128 {vr(VF+8*oth+4,4)}, v134 offset:{t*TS+1040}")
                    if var == "Am": k("s_mov_b64 exec, -1")
                else: k(f"ds_read_b128 {vr(KF+4*cur,4)}, v133 offset:{t*TS}")
            ps = oth if ph == 0 else cur
            ks = cur if ph == 0 else oth
            if var in ("A", "A0", "Am", "Anoexp", "Anopv", "Anos"):
                smf = lambda O_, S_, h, sl: k(f"v_smfmac_f32_32x32x32_bf16 {vr(O_,16)}, {vr(VF+8*sl+4*h,4)}, {vr(S_+8*h,8)}, v132" if var != "Anopv" else "s_nop 2")
                if var == "Anoexp": E = lambda i: k("s_nop 1")
                E(0); E(1); smf(Oo, So, 1, ps); E(2); E(3); E(4)
                if ph: k("s_waitcnt lgkmcnt(0)")
                k(f"v_mfma_f32_32x32x16_bf16 {vr(So,16)}, {vr(KF+4*ks,4)}, {vr(Q,4)}, {vr(C,16) if var != 'A0' else 0}"); rd()
                for i in range(5, 11): E(i)
                smf(O, S, 0, cur)
                for i in range(11, 16): E(i)
            elif var == "B":
                P = PK + 8 * ph; Po = PK + 8 * (ph ^ 1)
                cv = lambda i: k(f"v_cvt_pk_bf16_f32 v{P+i}, v{S+2*i}, v{S+2*i+1}")
                mm = lambda O_, P_, h, sl: k(f"v_mfma_f32_32x32x16_bf16 {vr(O_,16)}, {vr(VF+8*sl+4*h,4)}, {vr(P_+4*h,4)}, {vr(O_,16)}")
                E(0); E(1); mm(Oo, Po, 1, ps); E(2); E(3); cv(0); E(4)
                if ph: k("s_waitcnt lgkmcnt(0)")
                k(f"v_mfma_f32_32x32x16_bf16 {vr(So,16)}, {vr(KF+4*ks,4)}, {vr(Q,4)}, {vr(C,16)}"); rd()
                E(5); cv(1); E(6); E(7); cv(2); E(8); E(9); cv(3); E(10); E(11); cv(4); mm(O, P, 0, cur); E(12); E(13); cv(5); E(14); E(15); cv(6); k("s_nop 0"); cv(7)
            elif var in ("C", "Cl"):
                smf = lambda O_, S_, h, sl: k(f"v_smfmac_f32_16x16x64_bf16 {vr(O_+4*h,4)}, {vr(VF+8*sl,4)}, {vr(S_+8*h,8)}, v132")
                sm = lambda q: k(f"v_mfma_f32_16x16x16_bf16 {vr(So+4*q,4)}, {vr(KF+4*ks+2*(q%2),2)}, {vr(Q+2*(q//2),2)}, {vr(C+4*q,4)}")
                ad = lambda i: (k(f"v_pk_add_f32 {vr(O+8+2*(i//4),2)}, {vr(O+8+2*(i//4),2)}, {vr(S+2*i,2)}") if var == "Cl" else None)
                E(0); E(1); smf(Oo, So, 1, ps); E(2); E(3); ad(0)
                if ph: k("s_waitcnt lgkmcnt(0)")
                sm(0)
                if ph == 0: k(f"ds_read_b128 {vr(VF+8*oth,4)}, v133 offset:{t*TS+1024}")
                else: rd()
                E(4); E(5); ad(1); sm(1); E(6); E(7); ad(2); sm(2); E(8); E(9); ad(3); sm(3); E(10); smf(O, S, 0, cur); E(11); ad(4); E(12); E(13); ad(5); E(14); E(15); ad(6); k("s_nop 0"); ad(7)
    return "".join("    " + x + "\n" for x in L)
def comp(name):
    L = []
    if "_" not in name: return ""
    if name.endswith("LD") or name.endswith("GE"):
        if name.endswith("LD"):
            for i in range(8):
                L.append(f"buffer_load_dwordx4 {vr(12+4*i,4)}, v133, s[12:15], s21 offen offset:{(i%4)*1024}")
                if i % 4 == 3: L += ["s_add_u32 s21, s21, 0x5000", "s_and_b32 s21, s21, 0x7f000"]
            L.append("s_waitcnt vmcnt(8)")
        else:
            L.append("s_setprio 2")
            for i in range(2):
                L.append(f"v_pk_mul_f32 {vr(20+2*i,2)}, {vr(4+2*i,2)}, {vr(4+2*i,2)}")
            for i in range(2): L.append(f"v_exp_f32 v{20+i}, v{4+i}"); L.append(f"v_rcp_f32 v{22+i}, v{5+i}")
            for i in range(4): L.append(f"v_pk_fma_f32 {vr(24+2*i,2)}, {vr(4+2*i,2)}, {vr(6,2)}, {vr(8,2)}")
        return "".join("    " + x + "\n" for x in L)
    for h in range(2):
        b = 76 + 16 * h; nb = 76 + 16 * (h ^ 1)
        for i in range(4): L.append(f"ds_read_b128 {vr(nb+4*i,4)}, v133 offset:{(h*4+i)*TS}")
        L.append("s_waitcnt lgkmcnt(4)")
        if name.endswith("G32"):
            for j in range(2):
                for i in range(2):
                    a = vr(12 + 16 * (2 * j + i), 16)
                    L.append(f"v_mfma_f32_32x32x16_bf16 {a}, {vr(b+4*j,4)}, {vr(b+8+4*i,4)}, {a}")
        else:
            for r in range(2):
                for j in range(2):
                    for i in range(2):
                        a = vr(12 + 4 * (4 * (2 * h + r) + 2 * j + i), 4)
                        L.append(f"v_mfma_f32_16x16x32_bf16 {a}, {vr(b+4*(j^r),4)}, {vr(b+8+4*i,4)}, {a}")
    return "".join("    " + x + "\n" for x in L)
def kernel(name):
    s = """
    s_load_dwordx4 s[4:7], s[0:1], 0
    v_and_b32 v1, 63, v0
    v_lshrrev_b32 v2, 6, v0
    v_lshlrev_b32 v133, 4, v1
    v_readfirstlane_b32 s20, v2
    v_mov_b32 v132, 0xdddddddd
    s_waitcnt lgkmcnt(0)
    s_mov_b32 s8, s4
    s_mov_b32 s9, s5
    s_mov_b32 s10, 0x100000
    s_mov_b32 s11, 0x00020000
    s_mov_b32 s12, s6
    s_mov_b32 s13, s7
    s_mov_b32 s14, 0x100000
    s_mov_b32 s15, 0x00020000
    s_lshl_b32 s21, s20, 11
    buffer_load_dwordx4 v[4:7], v133, s[12:15], s21 offen
    buffer_load_dwordx4 v[8:11], v133, s[12:15], s21 offen offset:1024
    s_mov_b32 s22, 0x4000
    s_mov_b32 s23, 0
"""
    for i in range(18):
        s += f"    s_mov_b32 m0, s23\n    s_nop 0\n    buffer_load_dwordx4 v133, s[12:15], s22 offen lds\n    s_add_u32 s22, s22, 1024\n    s_add_u32 s23, s23, 1024\n"
    s += "".join(f"    v_mov_b32 v{i}, 0\n" for i in list(range(12, 44)) + list(range(76, 132)) + list(range(136, 152)))
    s += "".join(f"    v_mov_b32 v{i}, -4.0\n" for i in range(44, 76))
    s += f"""
    s_waitcnt vmcnt(0)
    s_barrier
    v_mul_u32_u24 v140, {TS}, v1
    v_mov_b32 v144, 0x3f803f80
    v_mov_b32 v145, 0x3f803f80
    v_mov_b32 v146, 0x3f803f80
    v_mov_b32 v147, 0x3f803f80
    s_mov_b64 exec, 0xff
    ds_write_b128 v140, v[12:15] offset:2048
    ds_write_b128 v140, v[12:15] offset:2064
    ds_write_b128 v140, v[144:147] offset:2080
    ds_write_b128 v140, v[144:147] offset:2096
    s_mov_b64 exec, -1
    v_and_b32 v140, 15, v1
    v_lshlrev_b32 v140, 5, v140
    v_lshrrev_b32 v141, 5, v1
    v_lshl_add_u32 v140, v141, 9, v140
    v_and_b32 v141, 16, v1
    v_cmp_eq_u32 vcc, 0, v141
    v_mov_b32 v142, 1024
    s_nop 1
    v_cndmask_b32 v134, v142, v140, vcc
    v_and_b32 v141, 27, v1
    v_cmp_eq_u32 vcc, 16, v141
    v_mov_b32 v142, 1056
    s_nop 1
    v_cndmask_b32 v134, v134, v142, vcc
    s_waitcnt lgkmcnt(0)
    s_barrier
    s_memtime s[24:25]
    s_memrealtime s[26:27]
    s_waitcnt lgkmcnt(0)
    s_mov_b32 s40, 0xffff
    s_mov_b32 s41, 0xffff
    s_cmp_ge_u32 s20, 4
    s_cbranch_scc1 L_g{name}
    s_mov_b32 s16, 8
.p2align 6
L_{name}:
{loop(name.split("_")[0])}
    s_sub_u32 s16, s16, 1
    s_cmp_lg_u32 s16, 0
    s_cbranch_scc1 L_{name}
    s_branch L_e{name}
L_g{name}:
    s_mov_b32 s16, 32
L_gl{name}:
{comp(name)}
    s_sub_u32 s16, s16, 1
    s_cmp_lg_u32 s16, 0
    s_cbranch_scc1 L_gl{name}
L_e{name}:
    s_nop 15
    s_memtime s[28:29]
    s_memrealtime s[30:31]
    s_waitcnt lgkmcnt(0)
    s_sub_u32 s28, s28, s24
    s_sub_u32 s30, s30, s26
    v_mov_b32 v2, s28
    v_mov_b32 v3, s30
    s_lshl_b32 s3, s2, 4
    s_add_u32 s3, s3, s20
    s_lshl_b32 s3, s3, 3
    v_mov_b32 v1, 0
    s_mov_b64 exec, 1
    buffer_store_dwordx2 v[2:3], v1, s[8:11], s3 offen
    s_waitcnt vmcnt(0)
"""
    return s
names = ["A", "A_LD", "A_G32", "A_GE"]
xp.build(xp.wrap([(n + "_kernel", kernel(n), 168, 168, 1024) for n in names]), "en")
json.dump(names, open("en.json", "w"))
```
